```python
import torch

def _softmax(x, axis=-1):
    return torch.softmax(x, dim=axis)
def _gelu(x):
    return torch.nn.functional.gelu(x, approximate="tanh")
def _silu(x):
    return torch.nn.functional.silu(x)
def _sigmoid(x):
    return torch.sigmoid(x)
def _layernorm(x, axis=-1, eps=1e-5):
    m = x.mean(dim=axis, keepdim=True)
    v = x.var(dim=axis, keepdim=True, unbiased=False)
    return (x - m) / torch.sqrt(v + eps)
def _scatter_add(tgt, idx, src, axis=0):
    return tgt.clone().index_add_(axis, idx, src)
def _segment_sum(src, seg, n):
    out = torch.zeros((n,) + src.shape[1:], dtype=src.dtype)
    return out.index_add_(0, seg, src)
def _pad(x, pw):
    flat = tuple(v for pair in reversed(pw) for v in pair)
    return torch.nn.functional.pad(x, flat)

kernel_name = 'standalone__molecular_angular_gemnet__graph'

def setup_inputs():

    _w = (lambda a: (lambda t: t.to(torch.bfloat16) if t.is_floating_point() else t)(torch.as_tensor(a)))
    N, deg, De, L = 25000, 16, 16, 1
    E = N * deg
    T = E * deg
    NR = 8
    dist = torch.rand(E).to(float)
    angle = (torch.rand(T) * torch.pi).to(float)
    centers = torch.linspace(0.0, 1.0, NR).to(float)
    ang_freq = torch.arange(1, L + 1).to(float)
    return {
        "m": _w((lambda *s: torch.randn(*s, dtype=torch.bfloat16) * 0.05)(E, De)),
        "idx_in": _w((lambda lo, hi, *s: torch.randint(lo, hi, s))(0, E, T).to(torch.int64)),
        "idx_out": _w((lambda lo, hi, *s: torch.randint(lo, hi, s))(0, E, T).to(torch.int64)),
        "dist": _w(dist),
        "angle": _w(angle),
        "centers": _w(centers),
        "ang_freq": _w(ang_freq),
        "w_rbf": _w((lambda *s: torch.randn(*s, dtype=torch.bfloat16) * 0.2)(NR, De)),
        "w_sbf": _w((lambda *s: torch.randn(*s, dtype=torch.bfloat16) * 0.2)(NR * L, De)),
        "w_down": _w((lambda *s: torch.randn(*s, dtype=torch.bfloat16) * 0.2)(De, De)),
        "w_up": _w((lambda *s: torch.randn(*s, dtype=torch.bfloat16) * 0.2)(De, De)),
    }

def reference(m, idx_in, idx_out, dist, angle, centers, ang_freq, w_rbf, w_sbf, w_down, w_up):
    E, De = m.shape[0], m.shape[1]
    NR = centers.shape[0]
    L = ang_freq.shape[0]
    rbf = torch.exp(-10.0 * (dist[:, None] - centers[None, :]) ** 2)
    cbf = torch.cos(ang_freq[None, :] * angle[:, None])
    rbf_t = rbf[idx_out]
    sbf = torch.reshape(rbf_t[:, :, None] * cbf[:, None, :], (-1, NR * L))
    x = (m[idx_in] @ w_down) * (sbf @ w_sbf)
    agg = _segment_sum(x, idx_out, E)
    return m + (agg @ w_up) * (rbf @ w_rbf)
```

```python
class Asm:
    def __init__(self):
        self.lines = []
        self._lab = 0
    def __call__(self, s=""):
        for l in s.split("\n"):
            self.lines.append(l)
    def c(self, s): self.lines.append("    ; " + s)
    def label(self, name): self.lines.append(name + ":")
    def newlabel(self, base):
        self._lab += 1
        return f"{base}_{self._lab}"
    def text(self): return "\n".join(self.lines) + "\n"

def kd(name, vgpr, sgpr=102, accum=None, extra=""):
    acc = accum if accum is not None else ((vgpr + 3)//4)*4
    return f""".section .rodata,"a"
.p2align 6
.amdhsa_kernel {name}
  .amdhsa_next_free_vgpr {vgpr}
  .amdhsa_next_free_sgpr {sgpr}
  .amdhsa_accum_offset {acc}
  .amdhsa_group_segment_fixed_size 0
  .amdhsa_kernarg_size 112
  .amdhsa_user_sgpr_count 2
  .amdhsa_user_sgpr_kernarg_segment_ptr 1
  .amdhsa_system_sgpr_workgroup_id_x 1
  .amdhsa_float_denorm_mode_32 3
  .amdhsa_float_denorm_mode_16_64 3
{extra}.end_amdhsa_kernel
.text
"""
```

```python
from asmgen import Asm, kd
from common import *

def gen_k1(a, name="k1_kernel", opts=None):
    o = dict(mpf=1, nt_st=0, nt_ld=0, stamps=0)
    if opts: o.update(opts)
    ntl = " nt" if o["nt_ld"] else ""
    nts = " nt" if o["nt_st"] else ""
    CNT = 0; WT = 8192; RECB = 8320
    def stamp(n):
        if o["stamps"]:
            a(f"    s_memrealtime s[{64+2*n}:{65+2*n}]")
            a(f"    s_waitcnt lgkmcnt(0)")
    OUT = 10; IN = 36; ANG = 62
    def outr(e): return OUT + e
    def inr(e): return IN + e
    a(f".globl {name}"); a(".p2align 8"); a(f".type {name},@function"); a(f"{name}:")
    a(f"""    s_cmp_ge_u32 s2, {NW1}
    s_cbranch_scc1 K1_end
    s_load_dwordx4 s[4:7], s[0:1], 8
    s_load_dwordx2 s[8:9], s[0:1], 32       ; angle
    s_load_dwordx2 s[10:11], s[0:1], 48     ; ang_freq
    s_load_dwordx2 s[12:13], s[0:1], 0      ; m
    s_load_dwordx2 s[14:15], s[0:1], 104    ; ws
    v_lshlrev_b32 v1, 4, v0                 ; tid*16
    v_lshlrev_b32 v2, 3, v0                 ; tid*8
    v_lshlrev_b32 v3, 2, v0                 ; tid*4
    v_lshlrev_b32 v4, 1, v0                 ; tid*2
    v_lshrrev_b32 v5, 6, v0
    v_mov_b32 v6, 0
    v_mov_b32 v7, 0
    v_readfirstlane_b32 s3, v5
    ds_write_b64 v2, v[6:7] offset:{CNT}
    s_mul_i32 s40, s2, {CH*4}
    s_mul_i32 s41, s2, {CH*2}
    s_mul_i32 s42, s2, {REC_STRIDE}
    s_waitcnt lgkmcnt(0)
    s_add_u32 s16, s4, s40
    s_addc_u32 s17, s5, 0
    s_mov_b32 s18, {CH*4}
    s_mov_b32 s19, 0x20000
    s_add_u32 s20, s6, s40
    s_addc_u32 s21, s7, 0
    s_mov_b32 s22, {CH*4}
    s_mov_b32 s23, 0x20000
    s_add_u32 s24, s8, s41
    s_addc_u32 s25, s9, 0
    s_mov_b32 s26, {CH*2}
    s_mov_b32 s27, 0x20000
    s_add_u32 s28, s14, s42
    s_addc_u32 s29, s15, 0
    s_mov_b32 s30, {CH*6}
    s_mov_b32 s31, 0x20000
    s_add_u32 s32, s14, {TOFF}
    s_addc_u32 s33, s15, 0
    s_mov_b32 s34, {TSIZE}
    s_mov_b32 s35, 0x20000
    s_mov_b32 s36, s10
    s_mov_b32 s37, s11
    s_mov_b32 s38, 2
    s_mov_b32 s39, 0x20000""")
    stamp(0)
    for j in range(6):
        a(f"    s_mov_b32 s43, {j*16384}")
        a(f"    buffer_load_dwordx4 v[{OUT+4*j}:{OUT+4*j+3}], v1, s[20:23], s43 offen{ntl}")
        a(f"    buffer_load_dwordx4 v[{IN+4*j}:{IN+4*j+3}], v1, s[16:19], s43 offen{ntl}")
    a(f"    s_mov_b32 s43, {6*16384}")
    a(f"    buffer_load_dword v{OUT+24}, v3, s[20:23], s43 offen{ntl}")
    a(f"    buffer_load_dword v{IN+24}, v3, s[16:19], s43 offen{ntl}")
    a(f"    buffer_load_ushort v75, off, s[36:39], 0")
    for j in range(6):
        a(f"    s_mov_b32 s43, {j*8192}")
        a(f"    buffer_load_dwordx2 v[{ANG+2*j}:{ANG+2*j+1}], v2, s[24:27], s43 offen{ntl}")
    a(f"    s_mov_b32 s43, {6*8192}")
    a(f"    buffer_load_ushort v{ANG+12}, v4, s[24:27], s43 offen{ntl}")
    a(f"""    s_mov_b32 s44, {-RS & 0xffffffff}       ; -RS
    s_mov_b32 s45, 0x07f00000
    s_mov_b32 s46, 0x000f0000
    v_mov_b32 v8, 1
    v_cmp_gt_u32 s[48:49], {CH - 24576}, v0 ; tail mask (VOP3 form needs inline/sgpr)""" .replace(f"v_cmp_gt_u32 s[48:49], {CH - 24576}, v0", f"s_movk_i32 s47, {CH-24576}\n    v_cmp_gt_u32 s[48:49], s47, v0"))
    a("    s_barrier")
    NV = 14 + 1 + 7
    def key_elem(e):
        i, ou = inr(e), outr(e)
        a(f"""    v_lshrrev_b32 v76, 13, v{i}
    v_lshlrev_b32 v78, 1, v{ou}
    v_mul_u32_u24 v76, 37, v76
    v_and_b32 v78, 0x1fe0, v78
    v_lshrrev_b32 v76, 8, v76               ; r
    v_lshlrev_b32 v79, 8, v{ou}
    v_lshl_or_b32 v78, v76, 2, v78          ; ka
    v_mad_i32_i24 v{i}, v76, s44, v{i}      ; in_local
    ds_add_u32 v78, v8 offset:{CNT}
    v_lshlrev_b32 v{ou}, 16, v{ou}
    v_and_or_b32 v78, v79, s45, v78
    v_and_or_b32 v{ou}, v{ou}, s46, v78""")
    for j in range(6):
        a(f"    s_waitcnt vmcnt({(5-j)*2 + 2 + 8})")
        for q in range(4): key_elem(4*j+q)
    a(f"    s_waitcnt vmcnt(8)")
    a(f"    s_mov_b64 s[50:51], exec")
    a(f"    s_and_b64 exec, exec, s[48:49]")
    a(f"    s_cbranch_execz K1_notail1")
    key_elem(24)
    a("K1_notail1:")
    a(f"    s_mov_b64 exec, s[50:51]")
    stamp(1)
    a(f"""    s_waitcnt lgkmcnt(0)
    s_barrier
    ds_read_b64 v[76:77], v2 offset:{CNT}
    s_waitcnt lgkmcnt(0)
    v_add_u32 v78, v76, v77
    v_mov_b32 v79, v78
    s_nop 1
    v_add_u32_dpp v79, v79, v79 row_shr:1 row_mask:0xf bank_mask:0xf bound_ctrl:1
    s_nop 1
    v_add_u32_dpp v79, v79, v79 row_shr:2 row_mask:0xf bank_mask:0xf bound_ctrl:1
    s_nop 1
    v_add_u32_dpp v79, v79, v79 row_shr:4 row_mask:0xf bank_mask:0xf bound_ctrl:1
    s_nop 1
    v_add_u32_dpp v79, v79, v79 row_shr:8 row_mask:0xf bank_mask:0xf bound_ctrl:1
    s_nop 1
    v_add_u32_dpp v79, v79, v79 row_bcast:15 row_mask:0xa bank_mask:0xf
    s_nop 1
    v_add_u32_dpp v79, v79, v79 row_bcast:31 row_mask:0xc bank_mask:0xf
    s_nop 1
    v_readlane_b32 s52, v79, 63
    s_lshl_b32 s53, s3, 2
    v_mov_b32 v81, s53
    s_nop 0
    v_mov_b32 v80, s52
    ds_write_b32 v81, v80 offset:{WT}
    s_waitcnt lgkmcnt(0)
    s_barrier
    v_and_b32 v80, 15, v0
    v_lshlrev_b32 v80, 2, v80
    ds_read_b32 v81, v80 offset:{WT}
    s_waitcnt lgkmcnt(0)
    s_nop 1
    v_add_u32_dpp v81, v81, v81 row_shr:1 row_mask:0xf bank_mask:0xf bound_ctrl:1
    s_nop 1
    v_add_u32_dpp v81, v81, v81 row_shr:2 row_mask:0xf bank_mask:0xf bound_ctrl:1
    s_nop 1
    v_add_u32_dpp v81, v81, v81 row_shr:4 row_mask:0xf bank_mask:0xf bound_ctrl:1
    s_nop 1
    v_add_u32_dpp v81, v81, v81 row_shr:8 row_mask:0xf bank_mask:0xf bound_ctrl:1
    s_add_u32 s53, s3, 15
    s_and_b32 s53, s53, 15                  ; (wave-1)&15
    s_nop 3
    v_readlane_b32 s52, v81, s53
    s_cmp_eq_u32 s3, 0
    s_nop 3
    s_cselect_b32 s52, 0, s52
    v_sub_u32 v82, v79, v78
    v_add_u32 v82, s52, v82                 ; start0
    v_add_u32 v83, v82, v76                 ; start1
    ds_write_b64 v2, v[82:83] offset:{CNT}
    v_lshl_or_b32 v84, v76, 16, v82
    v_lshl_or_b32 v85, v77, 16, v83
    v_lshrrev_b32 v86, 2, v0
    v_lshlrev_b32 v86, 13, v86
    v_and_b32 v87, 3, v0
    v_lshl_add_u32 v86, v87, 3, v86
    s_lshl_b32 s43, s2, 5
    buffer_store_dwordx2 v[84:85], v86, s[32:35], s43 offen""")
    a("    s_waitcnt lgkmcnt(0)")
    a(f"    s_barrier")
    stamp(2)
    a(f"    s_mov_b32 s54, 0xffff")
    a(f"    s_mov_b32 s55, 0xffff0000")
    a(f"    s_mov_b32 s60, 0x3e22f983               ; 1/(2*pi)")
    POS = 91
    a(f"    s_waitcnt vmcnt(1)")
    if o["mpf"]:
        a(f"""    s_mov_b32 s56, s12
    s_mov_b32 s57, s13
    s_mov_b32 s58, {E*32}
    s_mov_b32 s59, 0x20000
    s_mul_i32 s43, s2, {391*128}
    v_lshlrev_b32 v88, 7, v0
    s_cmp_ge_u32 s3, 7
    s_cbranch_scc1 K1_nopf
    v_mov_b32 v90, 0x7fff0000
    s_movk_i32 s47, 391
    v_cmp_gt_u32 vcc, s47, v0
    s_nop 1
    v_cndmask_b32 v88, v90, v88, vcc
    buffer_load_dword v89, v88, s[56:59], s43 offen
K1_nopf:""")
    stamp(3)
    a(f"    v_lshlrev_b32 v75, 16, v75")
    def cbf_pair(reg, eA, eB):
        a(f"""    v_lshlrev_b32 v76, 16, v{reg}
    v_and_b32 v77, s55, v{reg}
    v_mul_f32 v76, v75, v76
    v_mul_f32 v77, v75, v77
    v_cvt_pk_bf16_f32 v78, v76, v77
    v_lshlrev_b32 v76, 16, v78
    v_and_b32 v77, s55, v78
    v_mul_f32 v76, s60, v76
    v_mul_f32 v77, s60, v77
    v_fract_f32 v76, v76
    v_fract_f32 v77, v77
    v_cos_f32 v76, v76
    v_cos_f32 v77, v77
    s_nop 0
    v_cvt_pk_bf16_f32 v78, v76, v77
    v_lshl_or_b32 v{inr(eA)}, v78, 16, v{inr(eA)}""")
        if eB is not None:
            a(f"    v_and_or_b32 v{inr(eB)}, v78, s55, v{inr(eB)}")
    def scatter_batch(elems):
        for n, e in enumerate(elems):
            a(f"    v_and_b32 v{POS+n}, s54, v{outr(e)}")
        for n, e in enumerate(elems):
            a(f"    ds_add_rtn_u32 v{POS+n}, v{POS+n}, v8 offset:{CNT}")
    def write_batch(elems):
        for n, e in enumerate(elems):
            p = POS + n
            a(f"""    s_waitcnt lgkmcnt({min(15, len(elems)-1-n + 2*n)})
    v_mul_u32_u24 v80, 6, v{p}
    v_and_b32 v81, 1, v{p}
    v_lshl_add_u32 v82, v81, 1, v80
    v_mad_i32_i24 v83, v81, -4, v80
    ds_write_b32 v82, v{inr(e)} offset:{RECB}
    ds_write_b16_d16_hi v83, v{outr(e)} offset:{RECB+4}""")
    for j in range(3):
        el = list(range(8*j, 8*j+8))
        scatter_batch(el)
        for q in range(4):
            k = 4*j + q
            cbf_pair(ANG + k, 2*k, 2*k+1)
        write_batch(el)
    a(f"    s_mov_b64 s[50:51], exec")
    a(f"    s_and_b64 exec, exec, s[48:49]")
    a(f"    s_cbranch_execz K1_notail2")
    scatter_batch([24])
    cbf_pair(ANG + 12, 24, None)
    write_batch([24])
    a("K1_notail2:")
    a(f"    s_mov_b64 exec, s[50:51]")
    a(f"    s_waitcnt lgkmcnt(0)")
    a(f"    s_barrier")
    stamp(4)
    for k in range(10):
        off = RECB + k*16384
        d = 10 + 4*k
        if off < 65536:
            a(f"    ds_read_b128 v[{d}:{d+3}], v1 offset:{off}")
        else:
            a(f"    v_add_u32 v76, {off}, v1")
            a(f"    ds_read_b128 v[{d}:{d+3}], v76")
    for k in range(10):
        d = 10 + 4*k
        a(f"    s_waitcnt lgkmcnt({9-k})")
        a(f"    s_mov_b32 s43, {k*16384}")
        a(f"    buffer_store_dwordx4 v[{d}:{d+3}], v1, s[28:31], s43 offen{nts}")
    if o["stamps"]:
        a("    s_waitcnt vmcnt(0)")
        stamp(5)
        a(f"""    s_cmp_lg_u32 s3, 0
    s_cbranch_scc1 K1_end
    s_add_u32 s56, s14, {48*1024*1024}
    s_addc_u32 s57, s15, 0
    s_mov_b32 s58, 65536
    s_mov_b32 s59, 0x20000
    s_lshl_b32 s43, s2, 6""")
        for n in range(6):
            a(f"    v_mov_b32 v{10+n}, s{64+2*n}")
        a(f"""    v_mov_b32 v16, 0
    v_mov_b32 v17, 0
    v_mov_b32 v1, 0
    s_mov_b64 exec, 1
    buffer_store_dwordx4 v[10:13], v1, s[56:59], s43 offen
    buffer_store_dwordx4 v[14:17], v1, s[56:59], s43 offen offset:16""")
    a("K1_end:")
    a("    s_endpgm")
    return 104
```

```python
from asmgen import Asm, kd
from common import *

NWV = 14
BSTR = 592
CNT = 0
OVF = 1024
BUF0 = 1088
BUFSZ = 98 * BSTR
K2_LDS = BUF0 + 2 * BUFSZ

def gen_k2(a, name="k2_kernel", opts=None):
    o = dict(stamps=0, fill_at=7, dbg=0)
    if opts: o.update(opts)
    vLane, vA32, vA16, vINa, vCBa, vCLa, vCLd, vK16, vIP = 1, 2, 3, 4, 5, 6, 7, 8, 9
    v592, vBufP, vCntP, vCntC, vOne, vCst = 10, 11, 12, 13, 14, 15
    vT = 16
    W1, W2 = 24, 28
    G = [32, 36]
    CBv, OHv, Sel, DX, DY, xT = 40, 44, 48, 52, 56, 60
    vIn, vGa = 64, 65
    RK = 66
    t0, t1, vMask, vSoff = 76, 77, 78, 79
    REC = 80
    ACC = 100
    sM, sREC, sTMP = 8, 12, 16
    sK = 20
    sMASK = 24
    sC1FC, sC11, sDB, sDC = 53, 54, 55, 56
    def stamp(n):
        if o["stamps"]:
            a(f"    s_memrealtime s[{64+2*n}:{65+2*n}]")
            a(f"    s_waitcnt lgkmcnt(0)")
    a(f".globl {name}"); a(".p2align 8"); a(f".type {name},@function"); a(f"{name}:")
    a(f"""    s_cmp_ge_u32 s2, 256
    s_cbranch_scc1 K2_end
    s_load_dwordx2 s[4:5], s[0:1], 0        ; m
    s_load_dwordx2 s[6:7], s[0:1], 104      ; ws
    s_load_dwordx2 s[22:23], s[0:1], 72     ; w_down
    v_lshrrev_b32 v{t0}, 6, v0
    v_and_b32 v{vLane}, 63, v0
    s_nop 0
    v_readfirstlane_b32 s3, v{t0}
    s_waitcnt lgkmcnt(0)""")
    stamp(0)
    a(f"""    ; SRD of this bin's slice of the offset table
    s_lshl_b32 s44, s2, 13
    s_add_u32 s44, s44, {TOFF}
    s_add_u32 s{sTMP}, s6, s44
    s_addc_u32 s{sTMP+1}, s7, 0
    s_mov_b32 s{sTMP+2}, 8192
    s_mov_b32 s{sTMP+3}, 0x20000
    v_lshrrev_b32 v{t0}, 1, v{vLane}
    v_mul_u32_u24 v{t0}, 28, v{t0}
    v_and_b32 v{t1}, 1, v{vLane}
    v_add_u32 v{t0}, v{t0}, v{t1}           ; c = 28*(l>>1) + (l&1)
    s_lshl_b32 s44, s3, 1
    v_add_u32 v{t1}, s44, v{t0}             ; w
    v_lshlrev_b32 v{t1}, 5, v{t1}
    buffer_load_dwordx4 v[{vT}:{vT+3}], v{t1}, s[{sTMP}:{sTMP+3}], 0 offen
    buffer_load_dwordx4 v[{vT+4}:{vT+7}], v{t1}, s[{sTMP}:{sTMP+3}], 0 offen offset:16
    s_mov_b32 s44, {REC_STRIDE}
    v_mul_lo_u32 v{vCst}, v{t0}, s44
    s_mul_i32 s44, s3, {2*REC_STRIDE}
    s_add_u32 s{sREC}, s6, s44
    s_addc_u32 s{sREC+1}, s7, 0
    s_sub_u32 s{sREC+2}, {256*REC_STRIDE}, s44
    s_mov_b32 s{sREC+3}, 0x20000
    s_mov_b32 s44, s22
    s_mov_b32 s45, s23
    s_mov_b32 s46, 512
    s_mov_b32 s47, 0x20000
    v_and_b32 v{t0}, 15, v{vLane}           ; n / i
    v_lshrrev_b32 v{t1}, 4, v{vLane}        ; kq
    v_and_b32 v{vK16}, 1, v{t1}
    v_lshlrev_b32 v{vGa}, 8, v{vK16}        ; (kq&1)*256
    v_lshl_add_u32 v{vGa}, v{t0}, 1, v{vGa}
    v_lshlrev_b32 v{vK16}, 4, v{vK16}       ; (kq&1)*16""")
    for j in range(8):
        a(f"    buffer_load_ushort v{G[0]+j}, v{vGa}, s[44:47], 0 offen offset:{j*32}")
    a(f"""    ; constants
    v_lshl_or_b32 v{vIP}, v{t0}, 16, v{t0}  ; i | i<<16
    v_mov_b32 v{v592}, {BSTR}
    v_mov_b32 v{vOne}, 1
    s_movk_i32 s{sC1FC}, 0x1fc
    s_mov_b32 s{sC11}, 0x00010001
    s_mul_i32 s48, s3, {7*BSTR}
    s_add_u32 s48, s48, {BUF0}
    v_lshrrev_b32 v{vINa}, 1, v{t1}
    v_lshlrev_b32 v{vINa}, 1, v{vINa}
    v_lshl_add_u32 v{vINa}, v{t0}, 2, v{vINa}
    v_add_u32 v{vINa}, s48, v{vINa}
    v_lshlrev_b32 v{vCBa}, 4, v{t1}
    v_add_u32 v{vCBa}, s48, v{vCBa}
    v_lshlrev_b32 v{vCLa}, 2, v{vLane}
    v_add_u32 v{vIn}, 256, v{vCLa}
    v_cmp_gt_u32 vcc, 32, v{vLane}
    v_mov_b32 v{vCLd}, 0
    v_mov_b32 v{vGa}, -1
    v_cndmask_b32 v{vCLa}, v{vIn}, v{vCLa}, vcc
    v_cndmask_b32 v{vCLd}, v{vCLd}, v{vGa}, vcc
    v_add_u32 v{vCLa}, s48, v{vCLa}
    v_and_b32 v{vIn}, 31, v{vLane}
    v_lshrrev_b32 v{vGa}, 1, v{vIn}
    v_mul_u32_u24 v{vGa}, 12, v{vGa}
    v_and_b32 v{vIn}, 1, v{vIn}
    v_lshl_add_u32 v{vA32}, v{vIn}, 3, v{vGa}
    v_lshl_add_u32 v{vA16}, v{vIn}, 1, v{vGa}
    v_add_u32 v{vA16}, 4, v{vA16}
    v_mov_b32 v{vBufP}, {BUF0}
    v_mov_b32 v{vCntP}, {CNT}
    s_mul_i32 s49, s3, 28
    v_lshl_add_u32 v{vCntC}, v{vLane}, 2, s49
    v_mov_b32 v{vIn}, 0
    v_lshlrev_b32 v{vGa}, 2, v0
    s_movk_i32 s49, 272
    v_cmp_gt_u32 vcc, s49, v0
    s_and_saveexec_b64 s[50:51], vcc
    ds_write_b32 v{vGa}, v{vIn}
    s_mov_b64 exec, s[50:51]
    ; sentinel-fill this wave's buckets in both buffers""")
    for buf in range(2):
        if buf == 1: a(f"    v_add_u32 v{vGa}, {BUFSZ}, v{vCLa}")
        ad = vCLa if buf == 0 else vGa
        for j in range(7):
            a(f"    ds_write_b32 v{ad}, v{vCLd} offset:{j*BSTR}")
        a(f"    s_mov_b32 exec_lo, 0x0000ffff")
        a(f"    s_mov_b32 exec_hi, 0x0000ffff")
        for j in range(7):
            a(f"    ds_write_b32 v{ad}, v{vCLd} offset:{j*BSTR+128}")
        a(f"    s_mov_b64 exec, -1")
    for j in range(7):
        for p in range(4):
            a(f"    v_mov_b32 v{ACC+4*j+p}, 0")
    a(f"    s_waitcnt vmcnt(0)")
    a(f"    v_cmp_gt_u32 vcc, 32, v{vLane}          ; kq < 2")
    for p in range(4):
        a(f"    v_lshl_or_b32 v{G[0]+2*p}, v{G[0]+2*p+1}, 16, v{G[0]+2*p}")
    for p in range(4):
        a(f"    v_cndmask_b32 v{W1+p}, 0, v{G[0]+2*p}, vcc")
    a(f"    s_not_b64 vcc, vcc")
    for p in range(4):
        a(f"    v_cndmask_b32 v{W2+p}, 0, v{G[0]+2*p}, vcc")
    a(f"""    ; SRD m slice for phase 0
    s_mov_b32 s{sM}, s4
    s_mov_b32 s{sM+1}, s5
    s_mov_b32 s{sM+2}, {RS*32}
    s_mov_b32 s{sM+3}, 0x20000
    s_mov_b32 s{sDB}, {BUFSZ}
    s_movk_i32 s{sDC}, 512
    s_waitcnt lgkmcnt(0)
    s_barrier""")
    stamp(1)

    def prod_load():
        a(f"""    v_and_b32 v{t0}, 1, v{vT}               ; par
    v_lshrrev_b32 v{t1}, 16, v{vT}          ; len
    v_add_u32 v{t1}, v{t1}, v{t0}           ; len + par
    v_and_b32 v{vSoff}, 0xfffe, v{vT}
    v_cmp_lt_u32 s[58:59], 32, v{t1}        ; long sub-segments
    v_min_u32 v{t1}, 32, v{t1}
    v_sub_u32 v{t1}, v{t1}, v{t0}           ; n1
    v_mad_u32_u24 v{vSoff}, v{vSoff}, 6, v{vCst}
    v_cmp_eq_u32 vcc, 32, v{t1}
    v_bfm_b32 v{vMask}, v{t1}, v{t0}
    s_and_b32 s58, s58, 0xfffff
    s_mov_b32 s59, 0
    v_cndmask_b32 v{vMask}, v{vMask}, -1, vcc
    s_nop 0""".replace(f"v_cndmask_b32 v{vMask}, v{vMask}, -1, vcc", f"v_cndmask_b32 v{vMask}, v{vMask}, v{vCLd}, vcc"))
        def rl(s):
            so = 44 + 2*(s & 1)
            a(f"    v_readlane_b32 s{sMASK+2*s}, v{vMask}, {2*s}")
            a(f"    v_readlane_b32 s{sMASK+2*s+1}, v{vMask}, {2*s+1}")
            a(f"    v_readlane_b32 s{so}, v{vSoff}, {2*s}")
            a(f"    v_readlane_b32 s{so+1}, v{vSoff}, {2*s+1}")
        rl(0)
        for s in range(10):
            if s + 1 < 10: rl(s+1)
            else: a("    s_nop 3")
            so = 44 + 2*(s & 1)
            a(f"    s_mov_b32 exec_lo, s{sMASK+2*s}")
            a(f"    s_mov_b32 exec_hi, 0")
            if s == 0: a("    s_nop 0")
            a(f"    buffer_load_dword v{REC+2*s}, v{vA32}, s[{sREC}:{sREC+3}], s{so} offen")
            a(f"    buffer_load_ushort v{REC+2*s+1}, v{vA16}, s[{sREC}:{sREC+3}], s{so} offen")
            a(f"    s_mov_b32 exec_lo, 0")
            a(f"    s_mov_b32 exec_hi, s{sMASK+2*s+1}")
            a(f"    buffer_load_dword v{REC+2*s}, v{vA32}, s[{sREC}:{sREC+3}], s{so+1} offen")
            a(f"    buffer_load_ushort v{REC+2*s+1}, v{vA16}, s[{sREC}:{sREC+3}], s{so+1} offen")
            a(f"    s_mov_b64 exec, -1")

    def place(w0, ol, rank):
        a(f"""    v_lshrrev_b32 v{t0}, 4, v{ol}
    v_lshlrev_b16 v{t1}, v{ol}, v{vOne}
    v_mad_u32_u24 v{t0}, v{t0}, v{v592}, v{vBufP}
    v_lshl_add_u32 v{t0}, v{rank}, 1, v{t0}
    ds_write_b16 v{t0}, v{w0}
    ds_write_b16_d16_hi v{t0}, v{w0} offset:192
    ds_write_b16 v{t0}, v{t1} offset:384""")
    def rank_of(ol, rank):
        a(f"""    v_lshrrev_b32 v{t0}, 2, v{ol}
    v_and_or_b32 v{t0}, v{t0}, s{sC1FC}, v{vCntP}
    ds_add_rtn_u32 v{rank}, v{t0}, v{vOne}""")

    lab = [0]
    def fill(tag):
        a(f"    s_waitcnt lgkmcnt(0)")
        for s in range(10):
            a(f"    s_mov_b64 exec, s[{sMASK+2*s}:{sMASK+2*s+1}]")
            rank_of(REC+2*s+1, RK+s)
        for s in range(10):
            a(f"    s_mov_b64 exec, s[{sMASK+2*s}:{sMASK+2*s+1}]")
            a(f"    s_waitcnt lgkmcnt({min(15, 9 - s + 3*s)})")
            place(REC+2*s, REC+2*s+1, RK+s)
        a(f"    s_mov_b64 exec, -1")
        a(f"""    s_cmp_eq_u32 s58, 0
    s_cbranch_scc1 K2_nolong_{tag}
K2_long_{tag}:
    s_ff1_i32_b32 s44, s58                  ; lane l
    s_bitset0_b32 s58, s44
    v_readlane_b32 s45, v{vT}, s44          ; entry
    v_readlane_b32 s46, v{vCst}, s44        ; c*STRIDE
    s_nop 3
    s_and_b32 s47, s45, 0xffff              ; start
    s_lshr_b32 s48, s45, 16                 ; len
    s_and_b32 s49, s47, 1
    s_sub_u32 s49, 32, s49                  ; done
    s_add_u32 s47, s47, s49                 ; pos
    s_sub_u32 s48, s48, s49                 ; rem
K2_longloop_{tag}:
    s_and_b32 s49, s47, 1                   ; par
    s_sub_u32 s50, 32, s49
    s_min_u32 s50, s50, s48                 ; n
    s_bfm_b64 s[60:61], s50, s49
    s_sub_u32 s51, s47, s49
    s_mul_i32 s51, s51, 6
    s_add_u32 s51, s51, s46
    s_mov_b32 exec_lo, s60
    s_mov_b32 exec_hi, 0
    buffer_load_dword v{RK}, v{vA32}, s[{sREC}:{sREC+3}], s51 offen
    buffer_load_ushort v{RK+1}, v{vA16}, s[{sREC}:{sREC+3}], s51 offen
    s_waitcnt vmcnt(0)""")
        rank_of(RK+1, RK+2)
        a(f"    s_waitcnt lgkmcnt(0)")
        place(RK, RK+1, RK+2)
        a(f"""    s_mov_b64 exec, -1
    s_add_u32 s47, s47, s50
    s_sub_u32 s48, s48, s50
    s_cmp_lg_u32 s48, 0
    s_cbranch_scc1 K2_longloop_{tag}
    s_cmp_lg_u32 s58, 0
    s_cbranch_scc1 K2_long_{tag}
K2_nolong_{tag}:""")

    def rotate_T():
        for p in range(6):
            a(f"    v_mov_b32 v{vT+p}, v{vT+p+1}")

    def sel_calc():
        for p in range(4):
            a(f"    v_pk_lshrrev_b16 v{Sel+p}, v{vIP}, v{OHv+p}")
        for p in range(4):
            a(f"    v_and_b32 v{Sel+p}, s{sC11}, v{Sel+p}")
        for p in range(4):
            a(f"    v_pk_mul_lo_u16 v{Sel+p}, v{Sel+p}, v{CBv+p}")
    def off(n):
        j, t = n // 2, n % 2
        return j*BSTR + t*64

    prod_load()
    a(f"    s_waitcnt vmcnt(0)")
    fill("p")
    rotate_T()
    a(f"    s_waitcnt lgkmcnt(0)")
    a(f"    s_barrier")
    stamp(2)
    a(f"""    v_add_u32 v{vBufP}, s{sDB}, v{vBufP}
    v_add_u32 v{vCntP}, s{sDC}, v{vCntP}
    s_mov_b32 s{sK}, 0
    s_mov_b64 s[62:63], 0""")
    a("K2_loop:")
    a(f"""    ds_read_u16 v{vIn}, v{vINa} offset:{off(0)}
    s_cmp_ge_u32 s{sK}, {R-1}
    s_cbranch_scc1 K2_noload""")
    prod_load()
    a("K2_noload:")
    a(f"""    s_waitcnt lgkmcnt(0)""")
    a(f"""    v_lshl_add_u32 v{vGa}, v{vIn}, 5, v{vK16}
    buffer_load_dwordx4 v[{G[0]}:{G[0]+3}], v{vGa}, s[{sM}:{sM+3}], 0 offen
    ds_read_b32 v{RK}, v{vCntC}
    ds_read_u16 v{vIn}, v{vINa} offset:{off(1)}
    ds_read_b128 v[{CBv}:{CBv+3}], v{vCBa} offset:{off(0)+192}
    ds_read_b128 v[{OHv}:{OHv+3}], v{vCBa} offset:{off(0)+384}
    s_waitcnt lgkmcnt(3)
    v_cmp_lt_u32 vcc, 64, v{RK}
    s_movk_i32 s57, 96
    v_cmp_lt_u32 s[46:47], s57, v{RK}
    v_mov_b32 v{RK}, 0
    s_and_b32 s21, vcc_lo, 0x7f
    s_and_b32 s46, s46, 0x7f
    s_or_b32 s62, s62, s46
    s_mov_b32 exec_lo, 0x7f
    s_mov_b32 exec_hi, 0
    ds_write_b32 v{vCntC}, v{RK}
    s_mov_b64 exec, -1""")
    for n in range(14):
        j, t = n // 2, n % 2
        g = G[n & 1]; gn = G[(n+1) & 1]
        if n == o["fill_at"]:
            a(f"    s_cmp_ge_u32 s{sK}, {R-1}")
            a(f"    s_cbranch_scc1 K2_nofill")
            fill("l")
            a("K2_nofill:")
        a(f"    s_waitcnt lgkmcnt(0)")
        if n + 1 < 14:
            a(f"    v_lshl_add_u32 v{vGa}, v{vIn}, 5, v{vK16}")
            a(f"    buffer_load_dwordx4 v[{gn}:{gn+3}], v{vGa}, s[{sM}:{sM+3}], 0 offen")
            if n + 2 < 14:
                a(f"    ds_read_u16 v{vIn}, v{vINa} offset:{off(n+2)}")
            a(f"    s_waitcnt vmcnt(1)")
        else:
            a(f"    s_waitcnt vmcnt(0)")
        a(f"    v_mfma_f32_16x16x32_bf16 v[{DX}:{DX+3}], v[{g}:{g+3}], v[{W1}:{W1+3}], 0")
        a(f"    v_mfma_f32_16x16x32_bf16 v[{DY}:{DY+3}], v[{g}:{g+3}], v[{W2}:{W2+3}], 0")
        sel_calc()
        if n + 1 < 14:
            a(f"    ds_read_b128 v[{CBv}:{CBv+3}], v{vCBa} offset:{off(n+1)+192}")
            a(f"    ds_read_b128 v[{OHv}:{OHv+3}], v{vCBa} offset:{off(n+1)+384}")
        for p in range(4):
            a(f"    v_cvt_pk_bf16_f32 v{xT+p}, v{DX+p}, v{DY+p}")
        if t == 1:
            a(f"    ds_write_b32 v{vCLa}, v{vCLd} offset:{j*BSTR}")
            a(f"    s_nop 0")
        else:
            a(f"    s_nop 1")
        a(f"    v_mfma_f32_16x16x32_bf16 v[{ACC+4*j}:{ACC+4*j+3}], v[{xT}:{xT+3}], v[{Sel}:{Sel+3}], v[{ACC+4*j}:{ACC+4*j+3}]")
    a(f"""    s_cmp_eq_u32 s21, 0
    s_cbranch_scc1 K2_nothird""")
    for j in range(7):
        oj = j*BSTR + 128
        a(f"""    s_bitcmp1_b32 s21, {j}
    s_cbranch_scc0 K2_third_skip{j}
    ds_read_u16 v{vIn}, v{vINa} offset:{oj}
    ds_read_b128 v[{CBv}:{CBv+3}], v{vCBa} offset:{oj+192}
    ds_read_b128 v[{OHv}:{OHv+3}], v{vCBa} offset:{oj+384}
    s_waitcnt lgkmcnt(0)
    v_lshl_add_u32 v{vGa}, v{vIn}, 5, v{vK16}
    buffer_load_dwordx4 v[{G[0]}:{G[0]+3}], v{vGa}, s[{sM}:{sM+3}], 0 offen
    s_mov_b32 exec_lo, 0x0000ffff
    s_mov_b32 exec_hi, 0x0000ffff
    ds_write_b32 v{vCLa}, v{vCLd} offset:{oj}
    s_mov_b64 exec, -1""")
        sel_calc()
        a(f"""    s_waitcnt vmcnt(0)
    v_mfma_f32_16x16x32_bf16 v[{DX}:{DX+3}], v[{G[0]}:{G[0]+3}], v[{W1}:{W1+3}], 0
    v_mfma_f32_16x16x32_bf16 v[{DY}:{DY+3}], v[{G[0]}:{G[0]+3}], v[{W2}:{W2+3}], 0
    s_nop 7""")
        for p in range(4):
            a(f"    v_cvt_pk_bf16_f32 v{xT+p}, v{DX+p}, v{DY+p}")
        a(f"""    s_nop 1
    v_mfma_f32_16x16x32_bf16 v[{ACC+4*j}:{ACC+4*j+3}], v[{xT}:{xT+3}], v[{Sel}:{Sel+3}], v[{ACC+4*j}:{ACC+4*j+3}]
K2_third_skip{j}:""")
    a("K2_nothird:")
    a(f"""    s_add_u32 s{sK}, s{sK}, 1
    s_cmp_ge_u32 s{sK}, {R}
    s_cbranch_scc1 K2_done""")
    rotate_T()
    a(f"""    ; consumer addresses move by +DB, producer by -DB
    v_add_u32 v{vINa}, s{sDB}, v{vINa}
    v_add_u32 v{vCBa}, s{sDB}, v{vCBa}
    v_add_u32 v{vCLa}, s{sDB}, v{vCLa}
    v_add_u32 v{vCntC}, s{sDC}, v{vCntC}
    v_subrev_u32 v{vBufP}, s{sDB}, v{vBufP}
    v_subrev_u32 v{vCntP}, s{sDC}, v{vCntP}
    s_sub_u32 s{sDB}, 0, s{sDB}
    s_sub_u32 s{sDC}, 0, s{sDC}
    s_add_u32 s{sM}, s{sM}, {RS*32}
    s_addc_u32 s{sM+1}, s{sM+1}, 0
    s_cmp_eq_u32 s{sK}, {R-1}
    s_cselect_b32 s{sM+2}, {(E - (R-1)*RS)*32}, s{sM+2}
    s_waitcnt lgkmcnt(0)
    s_barrier
    s_branch K2_loop""")
    a("K2_done:")
    stamp(3)
    a(f"""    v_mov_b32 v{t0}, {OVF}
    v_mov_b32 v{t1}, s62
    s_cmp_eq_u32 s62, 0
    s_cbranch_scc1 K2_noovf
    ds_write_b32 v{t0}, v{t1}
K2_noovf:
    s_waitcnt lgkmcnt(0)
    s_barrier
    ds_read_b32 v{t1}, v{t0}
    s_waitcnt lgkmcnt(0)
    v_readfirstlane_b32 s63, v{t1}""")
    if o.get("slow"):
        o["slow"](a, locals())
    sW = 44
    vE, vD, vMr = 2, 32, 40
    vC = 54
    wsT, wrT, wuT = 58, 60, 62
    a(f"""    s_load_dwordx2 s[8:9], s[0:1], 24       ; dist
    s_load_dwordx2 s[10:11], s[0:1], 40     ; centers
    s_load_dwordx4 s[12:15], s[0:1], 56
    s_load_dwordx4 s[16:19], s[0:1], 80
    v_and_b32 v3, 15, v{vLane}              ; i
    v_lshrrev_b32 v4, 4, v{vLane}           ; q
    ; e0 = 7v*4096 + b*16 + i
    s_mul_i32 s48, s3, {7*4096}
    s_lshl_b32 s49, s2, 4
    s_add_u32 s48, s48, s49
    v_add_u32 v{vE}, s48, v3
    v_lshlrev_b32 v5, 1, v{vE}
    v_lshlrev_b32 v6, 5, v{vE}
    v_lshl_add_u32 v6, v4, 3, v6
    v_lshlrev_b32 v7, 7, v4
    v_lshl_add_u32 v7, v3, 1, v7
    v_lshlrev_b32 v8, 3, v4
    s_waitcnt lgkmcnt(0)
    ; dist
    s_mov_b32 s44, s8
    s_mov_b32 s45, s9
    s_mov_b32 s46, {E*2}
    s_mov_b32 s47, 0x20000""")
    for j in range(7):
        a(f"    s_mov_b32 s48, {j*8192}")
        a(f"    buffer_load_ushort v{vD+j}, v5, s[44:47], s48 offen")
    a(f"""    s_mov_b32 s24, s4
    s_mov_b32 s25, s5
    s_mov_b32 s26, {E*32}
    s_mov_b32 s27, 0x20000""")
    for j in range(7):
        a(f"    s_mov_b32 s48, {j*131072}")
        a(f"    buffer_load_dwordx2 v[{vMr+2*j}:{vMr+2*j+1}], v6, s[24:27], s48 offen")
    a(f"""    s_mov_b32 s28, s10
    s_mov_b32 s29, s11
    s_mov_b32 s30, 16
    s_mov_b32 s31, 0x20000""")
    for jj in range(4):
        a(f"    buffer_load_ushort v{vC+jj}, v8, s[28:31], 0 offen offset:{jj*2}")
    def wload(ptr, size, dst, srd):
        a(f"""    s_mov_b32 s{srd}, s{ptr}
    s_mov_b32 s{srd+1}, s{ptr+1}
    s_mov_b32 s{srd+2}, {size}
    s_mov_b32 s{srd+3}, 0x20000""")
        for jj in range(4):
            a(f"    buffer_load_ushort v{dst+jj}, v7, s[{srd}:{srd+3}], 0 offen offset:{jj*32}")
    TW = 64
    wload(14, 256, TW, 32)
    wload(12, 256, TW+4, 36)
    wload(16, 512, TW+8, 40)
    a(f"""    s_mov_b32 s44, s18
    s_mov_b32 s45, s19
    s_mov_b32 s46, {E*32}
    s_mov_b32 s47, 0x20000
    s_mov_b32 s50, 0xffff0000
    s_mov_b32 s51, 0xc1200000               ; -10.0
    s_mov_b32 s52, 0x3fb8aa3b               ; log2(e)
    s_waitcnt vmcnt(0)""")
    for m_, dst in enumerate((wsT, wrT, wuT)):
        for p in range(2):
            a(f"    v_lshl_or_b32 v{dst+p}, v{TW+4*m_+2*p+1}, 16, v{TW+4*m_+2*p}")
    for jj in range(4):
        a(f"    v_lshlrev_b32 v{vC+jj}, 16, v{vC+jj}")
    A, B_, RB, ST, RT, Y, Z = 64, 66, 68, 72, 76, 80, 84
    for j in range(7):
        a(f"    v_lshlrev_b32 v70, 16, v{vD+j}          ; dist")
        for p in range(2):
            a(f"""    v_sub_f32 v{A}, v70, v{vC+2*p}
    v_sub_f32 v{A+1}, v70, v{vC+2*p+1}
    v_cvt_pk_bf16_f32 v{B_}, v{A}, v{A+1}
    v_lshlrev_b32 v{A}, 16, v{B_}
    v_and_b32 v{A+1}, s50, v{B_}
    v_mul_f32 v{A}, v{A}, v{A}
    v_mul_f32 v{A+1}, v{A+1}, v{A+1}
    v_cvt_pk_bf16_f32 v{B_}, v{A}, v{A+1}
    v_lshlrev_b32 v{A}, 16, v{B_}
    v_and_b32 v{A+1}, s50, v{B_}
    v_mul_f32 v{A}, s51, v{A}
    v_mul_f32 v{A+1}, s51, v{A+1}
    v_cvt_pk_bf16_f32 v{B_}, v{A}, v{A+1}
    v_lshlrev_b32 v{A}, 16, v{B_}
    v_and_b32 v{A+1}, s50, v{B_}
    v_mul_f32 v{A}, s52, v{A}
    v_mul_f32 v{A+1}, s52, v{A+1}
    v_exp_f32 v{A}, v{A}
    v_exp_f32 v{A+1}, v{A+1}
    s_nop 0
    v_cvt_pk_bf16_f32 v{RB+p}, v{A}, v{A+1}""")
        a(f"""    s_nop 1
    v_mfma_f32_16x16x16_bf16 v[{ST}:{ST+3}], v[{wsT}:{wsT+1}], v[{RB}:{RB+1}], 0
    v_mfma_f32_16x16x16_bf16 v[{RT}:{RT+3}], v[{wrT}:{wrT+1}], v[{RB}:{RB+1}], 0
    s_nop 7""")
        for p in range(4):
            a(f"    v_mul_f32 v{ST+p}, v{ST+p}, v{ACC+4*j+p}")
        a(f"""    v_cvt_pk_bf16_f32 v{Y}, v{ST}, v{ST+1}
    v_cvt_pk_bf16_f32 v{Y+1}, v{ST+2}, v{ST+3}
    s_nop 1
    v_mfma_f32_16x16x16_bf16 v[{Z}:{Z+3}], v[{wuT}:{wuT+1}], v[{Y}:{Y+1}], 0
    v_lshlrev_b32 v{A}, 16, v{vMr+2*j}
    v_and_b32 v{A+1}, s50, v{vMr+2*j}
    v_lshlrev_b32 v{A+2}, 16, v{vMr+2*j+1}
    v_and_b32 v{A+3}, s50, v{vMr+2*j+1}
    s_nop 4""")
        for p in range(4):
            a(f"    v_fma_f32 v{A+p}, v{Z+p}, v{RT+p}, v{A+p}")
        a(f"""    v_cvt_pk_bf16_f32 v{Y+2}, v{A}, v{A+1}
    v_cvt_pk_bf16_f32 v{Y+3}, v{A+2}, v{A+3}
    s_mov_b32 s48, {j*131072}
    buffer_store_dwordx2 v[{Y+2}:{Y+3}], v6, s[44:47], s48 offen""")
    if o["stamps"] or o["dbg"]:
        a("    s_waitcnt vmcnt(0)")
        stamp(4)
        a(f"""    s_cmp_lg_u32 s3, 0
    s_cbranch_scc1 K2_end
    s_add_u32 s56, s6, {49*1024*1024}
    s_addc_u32 s57, s7, 0
    s_mov_b32 s58, 65536
    s_mov_b32 s59, 0x20000
    s_lshl_b32 s48, s2, 6""")
        for n in range(5):
            a(f"    v_mov_b32 v{10+n}, s{64+2*n}")
        a(f"""    v_mov_b32 v15, s63
    v_mov_b32 v16, 0
    v_mov_b32 v17, 0
    v_mov_b32 v1, 0
    s_mov_b64 exec, 1
    buffer_store_dwordx4 v[10:13], v1, s[56:59], s48 offen
    buffer_store_dwordx4 v[14:17], v1, s[56:59], s48 offen offset:16""")
    a("K2_end:")
    a("    s_endpgm")
    return 128
```

```python
import sys
from asmgen import Asm, kd
from k1_gen import gen_k1
from k2_gen import gen_k2, K2_LDS
from common import *
HDR = open("standalone__molecular_angular_gemnet__graph.s.ref").read().split("; Override launch geometry")[0] if False else None
def header():
    return """; Kernarg layout for this problem (112 bytes, ptrs only, base s[0:1]):
"""
def build(o1=None, o2=None):
    a = Asm()
    a(header().rstrip("\n"))
    a("; @launch kernel=gem_part_kernel grid=(256,1,1) block=(1024,1,1) lds=158720")
    a(f"; @launch kernel=gem_gath_kernel grid=(256,1,1) block=(896,1,1) lds={K2_LDS}")
    a('.amdgcn_target "amdgcn-amd-amdhsa--gfx950"')
    a(".text")
    n1 = gen_k1(a, name="gem_part_kernel", opts=o1)
    n2 = gen_k2(a, name="gem_gath_kernel", opts=o2)
    a(kd("gem_part_kernel", n1, 80))
    a(kd("gem_gath_kernel", n2, 80))
    return a.text()
if __name__ == "__main__":
    sys.stdout.write(build(dict(nt_ld=1, nt_st=1)))
```
